```python
import torch

def _softmax(x, axis=-1):
    return torch.softmax(x, dim=axis)
def _gelu(x):
    return torch.nn.functional.gelu(x, approximate="tanh")
def _silu(x):
    return torch.nn.functional.silu(x)
def _sigmoid(x):
    return torch.sigmoid(x)
def _layernorm(x, axis=-1, eps=1e-5):
    m = x.mean(dim=axis, keepdim=True)
    v = x.var(dim=axis, keepdim=True, unbiased=False)
    return (x - m) / torch.sqrt(v + eps)
def _scatter_add(tgt, idx, src, axis=0):
    return tgt.clone().index_add_(axis, idx, src)
def _segment_sum(src, seg, n):
    out = torch.zeros((n,) + src.shape[1:], dtype=src.dtype)
    return out.index_add_(0, seg, src)
def _pad(x, pw):
    flat = tuple(v for pair in reversed(pw) for v in pair)
    return torch.nn.functional.pad(x, flat)

kernel_name = 'gated_mix__spectral_gfnet__swiglu_ffn__prompt'

def setup_inputs():

    _w = (lambda a: (lambda t: t.to(torch.bfloat16) if t.is_floating_point() else t)(torch.as_tensor(a)))
    def _A_setup():
        B, S, D = 1, 2048, 1024
        Df = D // 2 + 1
        return {
            "x": _w((lambda *s: torch.randn(*s, dtype=torch.bfloat16) * 0.05)(B, S, D)),
            "w_r": _w((lambda *s: torch.randn(*s, dtype=torch.bfloat16) * 1.6)(S, Df) * 0.02),
            "w_i": _w((lambda *s: torch.randn(*s, dtype=torch.bfloat16) * 1.6)(S, Df) * 0.02),
        }
    _A_in = _A_setup()

    def _B_setup():
        B, S, D, F = 1, 2048, 1024, 3584
        return {
            "x": _w((lambda *s: torch.randn(*s, dtype=torch.bfloat16) * 0.05)(B, S, D)),
            "w_gate": _w((lambda *s: torch.randn(*s, dtype=torch.bfloat16) * 0.05)(D, F)),
            "w_up": _w((lambda *s: torch.randn(*s, dtype=torch.bfloat16) * 0.05)(D, F)),
            "w_down": _w((lambda *s: torch.randn(*s, dtype=torch.bfloat16) * 0.05)(F, D)),
        }
    _B_in = _B_setup()

    return {
        "A_x": _A_in["x"],
        "A_w_r": _A_in["w_r"],
        "A_w_i": _A_in["w_i"],
        "B_x": _B_in["x"],
        "B_w_gate": _B_in["w_gate"],
        "B_w_up": _B_in["w_up"],
        "B_w_down": _B_in["w_down"],
        "gate_w": _w((lambda *s: torch.randn(*s, dtype=torch.bfloat16) * 0.05)(1024) * 16.0),
    }

def reference(A_x, A_w_r, A_w_i, B_x, B_w_gate, B_w_up, B_w_down, gate_w):
    def _A_ref(x, w_r, w_i):
        B, S, D = x.shape
        X = (lambda x, axes=(-2,-1): torch.fft.rfft2(x.float(), dim=axes))(x, axes=(-2, -1))
        W = w_r + 1j * w_i
        X = X * W
        y = (lambda x, s, axes=(-2,-1): torch.fft.irfft2(x, s=s, dim=axes).to(torch.bfloat16))(X, (S, D), axes=(-2, -1))
        return y

    def _B_ref(x, w_gate, w_up, w_down):
        g = _silu(x @ w_gate)
        u = x @ w_up
        return (g * u) @ w_down

    x = A_x
    g = _sigmoid((x * gate_w).sum(-1, keepdims=True))
    a = _A_ref(x, A_w_r, A_w_i)
    b = _B_ref(x, B_w_gate, B_w_up, B_w_down)
    return g * a + (1 - g) * b
```

```python
class Asm:
    def __init__(self):
        self.L = []
        self.nlab = 0
    def e(self, s):
        self.L.append('    ' + s)
    def raw(self, s):
        self.L.append(s)
    def label(self, name):
        self.L.append(name + ':')
    def newlabel(self, base='L'):
        self.nlab += 1
        return f'{base}_{self.nlab}'
    def c(self, s):
        self.L.append('    ; ' + s)
    def text(self):
        return '\n'.join(self.L) + '\n'

def vr(b, n=1):
    return f'v{b}' if n == 1 else f'v[{b}:{b+n-1}]'
def ar(b, n=1):
    return f'a{b}' if n == 1 else f'a[{b}:{b+n-1}]'
def sr(b, n=1):
    return f's{b}' if n == 1 else f's[{b}:{b+n-1}]'
def rr(r, n=1):
    return vr(r[1], n) if r[0] == 'v' else ar(r[1], n)

def kernel_begin(A, name):
    A.raw(f'.globl {name}')
    A.raw('.p2align 8')
    A.raw(f'.type {name},@function')
    A.raw(f'{name}:')

def kernel_desc(name, vgpr=512, accum=256, sgpr=102):
    return '\n'.join([
        '.p2align 6',
        f'.amdhsa_kernel {name}',
        f'  .amdhsa_next_free_vgpr {vgpr}',
        f'  .amdhsa_next_free_sgpr {sgpr}',
        f'  .amdhsa_accum_offset {accum}',
        '  .amdhsa_group_segment_fixed_size 0',
        '  .amdhsa_kernarg_size 88',
        '  .amdhsa_user_sgpr_count 2',
        '  .amdhsa_user_sgpr_kernarg_segment_ptr 1',
        '  .amdhsa_system_sgpr_workgroup_id_x 1',
        '.end_amdhsa_kernel', ''])

def srd(A, s, lo, hi, nbytes, add=0):
    if add:
        A.e(f's_add_u32 s{s}, s{lo}, {add:#x}')
        A.e(f's_addc_u32 s{s+1}, s{hi}, 0')
    else:
        A.e(f's_mov_b32 s{s}, s{lo}')
        A.e(f's_mov_b32 s{s+1}, s{hi}')
    A.e(f's_mov_b32 s{s+2}, {nbytes:#x}')
    A.e(f's_mov_b32 s{s+3}, 0x20000')

def interleave(main, extra, start=0, every=2):
    out = []
    slots = {}
    for i, g in enumerate(extra):
        slots.setdefault(min(start + i * every, len(main) - 1), []).extend(g)
    for i, m in enumerate(main):
        out.append(m)
        out.extend(slots.get(i, []))
    return out

def place(main, groups):
    slots = {}
    for pos, g in groups:
        slots.setdefault(pos, []).extend(g)
    out = list(slots.get(-1, []))
    for i, m in enumerate(main):
        out.append(m)
        out.extend(slots.get(i, []))
    return out
```

```python
from asmlib import *
from layout import *
from g1 import write_stamps
import g1
def stamp(A, i, on): g1.stamp(A, i, on, 9)
import struct
def f2u(x): return struct.unpack('<I', struct.pack('<f', x))[0]
def lit(x): return f'{f2u(x):#x}'

SX, SWR, SWI, SWS, SGW, SDBG = 8, 12, 16, 20, 24, 28
S_W, S_C = 32, 33
S_T = 34
S_LOOP, S_SPIN = 48, 49
WS_SPAN = 48 * MB
CNT_A, CNT_W, CNT_B = 0, 64, 128
V_L, V_L16 = 1, 2
V_A = 3
TR, TI = 16, 32
D0R, D0I, D1R, D1I = 48, 64, 80, 96
P0R, P0I, P1R, P1I = 112, 120, 128, 136
VT = 144
VW = 160
VX = 192
FR, FI, FN = 0, 8, 16
E1R, E1I, E1N = 24, 32, 40
E2R, E2I, E2N = 48, 56, 64
A2R, A2I = 72, 80
B1R, B1I = 88, 96
ROWSTRIDE = 2064
SLAB = 4112
LDS_SCR = 132352

def mf(d, a, b, c):
    cc = '0' if c is None else f'v[{c}:{c+15}]'
    return f'v_mfma_f32_32x32x16_bf16 v[{d}:{d+15}], {a}, {b}, {cc}'
def v4(b): return f'v[{b}:{b+3}]'
def a4(b): return f'a[{b}:{b+3}]'
def v2(b): return f'v[{b}:{b+1}]'
rho0 = lambda j, i: 16 * j + 8 * (i // 4) + i % 4

def gen_angles(A, mults, vA, vB, dst_cos, dst_sin, extra=None, neg_sin=False, scale=None):
    e = A.e
    for n, m in enumerate(mults):
        t = dst_sin + n
        if m == 0: e(f'v_mov_b32 v{t}, v{vB}')
        else: e(f'v_fmamk_f32 v{t}, v{vA}, {lit(float(m))}, v{vB}')
        if extra and extra[n]: e(f'v_add_f32 v{t}, {lit(extra[n])}, v{t}')
        e(f'v_fract_f32 v{t}, v{t}')
    for n in range(len(mults)):
        e(f'v_cos_f32 v{dst_cos+n}, v{dst_sin+n}')
        e(f'v_sin_f32 v{dst_sin+n}, v{dst_sin+n}')
    e('s_nop 0')
    for n in range(len(mults)):
        if neg_sin: e(f'v_xor_b32 v{dst_sin+n}, 0x80000000, v{dst_sin+n}')
        if scale is not None:
            e(f'v_mul_f32 v{dst_cos+n}, {lit(scale)}, v{dst_cos+n}')
            e(f'v_mul_f32 v{dst_sin+n}, {lit(scale)}, v{dst_sin+n}')

def pack_to_agpr(A, src, dst, neg=False):
    e = A.e
    for q in range(8):
        e(f'v_cvt_pk_bf16_f32 v{VT}, v{src+2*q}, v{src+2*q+1}')
        if neg: e(f'v_xor_b32 v{VT}, 0x80008000, v{VT}')
        e(f'v_accvgpr_write_b32 a{dst+q}, v{VT}')

SL = [rho0(j, i) for j in range(2) for i in range(8)]
def lane_floats(A):
    e = A.e
    e(f'v_and_b32 v{VX}, 31, v{V_L}')
    e(f'v_cvt_f32_u32 v{VX}, v{VX}')
    e(f'v_lshrrev_b32 v{VX+1}, 5, v{V_L}')
    e(f'v_lshlrev_b32 v{VX+1}, 2, v{VX+1}')
    e(f'v_cvt_f32_u32 v{VX+1}, v{VX+1}')
def const3(A, dst, kind):
    e = A.e
    a, b = VX + 2, VX + 3
    if kind == 'F':
        e(f'v_mul_f32 v{a}, {lit(1/32)}, v{VX}'); e(f'v_mul_f32 v{b}, v{a}, v{VX+1}')
    elif kind == 'E1':
        e(f'v_mul_f32 v{a}, {lit(1/32)}, v{VX}'); e(f'v_mul_f32 v{b}, v{a}, v{VX+1}')
        e(f'v_fmac_f32 v{b}, 0.5, v{a}')
    elif kind == 'E2':
        e(f'v_fma_f32 v{a}, v{VX}, 2.0, 1.0'); e(f'v_mul_f32 v{a}, {lit(1/64)}, v{a}'); e(f'v_mul_f32 v{b}, v{a}, v{VX+1}')
    gen_angles(A, SL, a, b, D0R, D0I)
    pack_to_agpr(A, D0R, dst); pack_to_agpr(A, D0I, dst + 8, neg=True); pack_to_agpr(A, D0I, dst + 16)
def const_tw(A, den):
    e = A.e
    a, b = VX + 2, VX + 3
    e(f'v_mul_f32 v{a}, {lit(1/den)}, v{VX}'); e(f'v_mul_f32 v{b}, v{a}, v{VX+1}')
    gen_angles(A, SL, a, b, TR, TI, neg_sin=True)
def const_A2(A):
    e = A.e
    a, b = VX + 2, VX + 3
    t = VT
    e(f'v_bfe_u32 v{t}, v{V_L}, 4, 1'); e(f'v_lshlrev_b32 v{t}, 3, v{t}')
    e(f'v_bfe_u32 v{t+1}, v{V_L}, 2, 1'); e(f'v_lshl_add_u32 v{t}, v{t+1}, 2, v{t}')
    e(f'v_bfe_u32 v{t+1}, v{V_L}, 3, 1'); e(f'v_lshl_add_u32 v{t}, v{t+1}, 1, v{t}')
    e(f'v_bfe_u32 v{t+1}, v{V_L}, 1, 1'); e(f'v_add_u32 v{t}, v{t}, v{t+1}')
    e(f'v_cvt_f32_u32 v{a}, v{t}'); e(f'v_mul_f32 v{a}, {lit(1/32)}, v{a}')
    e(f'v_and_b32 v{t}, 1, v{V_L}'); e(f'v_cvt_f32_u32 v{t}, v{t}'); e(f'v_mul_f32 v{t}, {lit(0.25)}, v{t}')
    e(f'v_fma_f32 v{b}, v{a}, v{VX+1}, v{t}')
    gen_angles(A, SL, a, b, D0R, D0I)
    pack_to_agpr(A, D0R, A2R); pack_to_agpr(A, D0I, A2I)
def const_B1(A):
    e = A.e
    a, b = VX + 2, VX + 3
    e(f'v_mul_f32 v{a}, {lit(1/32)}, v{VX}'); e(f'v_mul_f32 v{b}, v{a}, v{VX+1}')
    mults = [8 * j + i // 2 for j in range(2) for i in range(8)]
    extra = [0.25 * (i % 2) for j in range(2) for i in range(8)]
    gen_angles(A, mults, a, b, D0R, D0I, extra=extra, scale=2.0 ** -20)
    pack_to_agpr(A, D0R, B1R); pack_to_agpr(A, D0I, B1I)

def cmul_pair(yr, yi, tr, ti, outr, outi, tmp, conj):
    n3 = ' neg_lo:[0,0,1] neg_hi:[0,0,1]'
    n2 = ' neg_lo:[0,1,0] neg_hi:[0,1,0]'
    return [f'v_pk_mul_f32 {v2(tmp)}, {v2(yi)}, {v2(ti)}',
            f'v_pk_mul_f32 {v2(tmp+2)}, {v2(yi)}, {v2(tr)}',
            f'v_pk_fma_f32 {v2(tmp)}, {v2(yr)}, {v2(tr)}, {v2(tmp)}' + ('' if conj else n3),
            f'v_pk_fma_f32 {v2(tmp+2)}, {v2(yr)}, {v2(ti)}, {v2(tmp+2)}' + (n2 if conj else ''),
            f'v_cvt_pk_bf16_f32 v{outr}, v{tmp}, v{tmp+1}',
            f'v_cvt_pk_bf16_f32 v{outi}, v{tmp+2}, v{tmp+3}']
def zipl(*ls):
    out = []
    for i in range(max(map(len, ls))):
        for l in ls:
            if i < len(l): out.append(l[i])
    return out
def twiddle1(yr, yi, outr, outi, conj):
    L = []
    for p in range(0, 8, 2):
        L += zipl(cmul_pair(yr+2*p, yi+2*p, TR+2*p, TI+2*p, outr+p, outi+p, VT, conj),
                  cmul_pair(yr+2*p+2, yi+2*p+2, TR+2*p+2, TI+2*p+2, outr+p+1, outi+p+1, VT+4, conj))
    return L

def signal(A, off):
    e = A.e
    e('s_waitcnt vmcnt(0) lgkmcnt(0)')
    e('s_barrier')
    lab = A.newlabel('Lsig')
    e(f's_cmp_lg_u32 s{S_W}, 0')
    e(f's_cbranch_scc1 {lab}')
    e(f'v_mov_b32 v{VT}, 1')
    e('s_mov_b64 exec, 1')
    e(f'buffer_atomic_add v{VT}, off, s[{SDBG}:{SDBG+3}], 0 offset:{off} sc1')
    e('s_mov_b64 exec, -1')
    A.label(lab)
def poll(A, conds):
    e = A.e
    lp, dn = A.newlabel('Lpoll'), A.newlabel('Lpd')
    e(f's_mov_b32 s{S_SPIN}, 200000')
    A.label(lp)
    for i, (off, n) in enumerate(conds):
        e(f'buffer_load_dword v{VT+i}, off, s[{SDBG}:{SDBG+3}], 0 offset:{off} sc1')
    e('s_waitcnt vmcnt(0)')
    for i, (off, n) in enumerate(conds):
        e(f'v_readfirstlane_b32 s{S_T+i}, v{VT+i}')
    e(f's_sub_u32 s{S_SPIN}, s{S_SPIN}, 1')
    e(f's_cbranch_scc1 {dn}')
    nx = A.newlabel('Lpn')
    for i, (off, n) in enumerate(conds):
        e(f's_cmp_lt_u32 s{S_T+i}, {n}')
        e(f's_cbranch_scc1 {nx}')
    e(f's_branch {dn}')
    A.label(nx)
    e('s_sleep 4')
    e(f's_branch {lp}')
    A.label(dn)

def wt_setup(A, vl, va, vs, st, s_w, s_jj):
    e = A.e
    e(f's_lshl_b32 s{st}, s2, 2'); e(f's_add_u32 s{st}, s{st}, s{s_w}')
    e(f's_and_b32 s{st+1}, s{st}, 15')
    e(f's_lshr_b32 s{st}, s{st}, 4')
    e(f's_and_b32 s{st+2}, s{st}, 3'); e(f's_lshl_b32 s{st+2}, s{st+2}, 3')
    e(f's_lshr_b32 s{st+3}, s{st}, 5'); e(f's_lshl_b32 s{st+3}, s{st+3}, 5'); e(f's_add_u32 s{st+2}, s{st+2}, s{st+3}')
    e(f's_bfe_u32 s{st+3}, s{st}, 0x30002'); e(f's_lshl_b32 s{st+3}, s{st+3}, 8'); e(f's_add_u32 s{st+2}, s{st+2}, s{st+3}')
    e(f's_mul_i32 s{st+2}, s{st+2}, 1026')
    e(f's_lshl_b32 s{st+3}, s{st+1}, 6'); e(f's_add_u32 s{st+2}, s{st+2}, s{st+3}')
    e(f'v_and_b32 v{va}, 7, v{vl}'); e(f'v_mul_u32_u24 v{va}, 1026, v{va}')
    e(f'v_lshrrev_b32 v{vs}, 3, v{vl}'); e(f'v_lshl_add_u32 v{va}, v{vs}, 1, v{va}')
    e(f'v_add_u32 v{va}, s{st+2}, v{va}')
    e(f's_lshl_b32 s{st+1}, s{st+1}, 18')
    e(f's_lshr_b32 s{st+3}, s{st}, 3'); e(f's_lshl_b32 s{st+3}, s{st+3}, 10'); e(f's_add_u32 s{st+1}, s{st+1}, s{st+3}')
    e(f's_and_b32 s{st+3}, s{st}, 7'); e(f's_lshl_b32 s{st+3}, s{st+3}, 7'); e(f's_add_u32 s{st+1}, s{st+1}, s{st+3}')
    e(f's_add_u32 s{st+1}, s{st+1}, {WS_WT}')
    e(f'v_lshlrev_b32 v{vs}, 13, v{vs}'); e(f'v_and_b32 v{vs+1}, 7, v{vl}'); e(f'v_lshl_add_u32 v{vs}, v{vs+1}, 4, v{vs}')
    e(f'v_add_u32 v{vs}, s{st+1}, v{vs}')
    for i in range(3): e(f's_mov_b32 s{s_jj+i}, {65664*(i+1)}')
def wt_loads(va, vd, swr, swi, s_jj):
    L = []
    for sub in range(4):
        for jj in range(4):
            so = '0' if jj == 0 else f's{s_jj+jj-1}'
            L.append(f'buffer_load_ushort v{vd+4*sub+jj}, v{va}, s[{swr}:{swr+3}], {so} offen offset:{16*sub}')
            L.append(f'buffer_load_ushort v{vd+16+4*sub+jj}, v{va}, s[{swi}:{swi+3}], {so} offen offset:{16*sub}')
    return L
def wt_pack(vd):
    return [f'v_lshl_or_b32 v{vd+i}, v{vd+16+i}, 16, v{vd+i}' for i in range(16)]
def wt_stores(vs, vd, sws, s_jj):
    L = []
    for sub in range(4):
        ins = []
        if sub: ins.append(f's_mov_b32 s{s_jj}, {sub*65536}')
        ins.append(f'buffer_store_dwordx4 v[{vd+4*sub}:{vd+4*sub+3}], v{vs}, s[{sws}:{sws+3}], {"0" if sub == 0 else "s%d" % s_jj} offen sc1')
        L.append(ins)
    return L

def pq_job(A):
    e = A.e
    t = VX + 8
    e(f's_lshl_b32 s{S_T}, s{S_C}, 6'); e(f'v_add_u32 v{t}, s{S_T}, v{V_L}')
    e(f'v_bfe_u32 v{t+1}, v{t}, 2, 5')
    e(f'v_lshrrev_b32 v{t+2}, 10, v{t}'); e(f'v_lshl_add_u32 v{t+1}, v{t+2}, 5, v{t+1}')
    e(f'v_and_b32 v{t+2}, 3, v{t}'); e(f'v_lshl_add_u32 v{t+1}, v{t+2}, 6, v{t+1}')
    e(f'v_bfe_u32 v{t+2}, v{t}, 7, 3'); e(f'v_lshl_add_u32 v{t+1}, v{t+2}, 8, v{t+1}')
    e(f'v_sub_u32 v{t+2}, 0, v{t+1}'); e(f'v_and_b32 v{t+2}, 2047, v{t+2}')
    e(f'v_mul_u32_u24 v{t+1}, 1026, v{t+1}'); e(f'v_mul_u32_u24 v{t+2}, 1026, v{t+2}')
    e(f'v_lshlrev_b32 v{t}, 2, v{t}')
    n = 0
    for col in (0, 1024):
        for addr in (t + 1, t + 2):
            for s in (SWR, SWI):
                e(f'buffer_load_ushort v{t+4+n}, v{addr}, s[{s}:{s+3}], 0 offen offset:{col}'); n += 1
def pq_finish(A):
    e = A.e
    t = VX + 8
    for n in range(8): e(f'v_lshlrev_b32 v{t+4+n}, 16, v{t+4+n}')
    e(f'v_add_f32 v{t+4}, v{t+4}, v{t+6}'); e(f'v_sub_f32 v{t+5}, v{t+5}, v{t+7}')
    e(f'v_add_f32 v{t+8}, v{t+8}, v{t+10}'); e(f'v_sub_f32 v{t+9}, v{t+9}, v{t+11}')
    e(f'v_add_f32 v{t+12}, v{t+4}, v{t+8}'); e(f'v_add_f32 v{t+13}, v{t+5}, v{t+9}')
    e(f'v_sub_f32 v{t+14}, v{t+4}, v{t+8}'); e(f'v_sub_f32 v{t+15}, v{t+5}, v{t+9}')
    for n in range(4): e(f'v_mul_f32 v{t+12+n}, {lit(0.125)}, v{t+12+n}')
    e(f'v_cvt_pk_bf16_f32 v{t+12}, v{t+12}, v{t+13}'); e(f'v_cvt_pk_bf16_f32 v{t+14}, v{t+14}, v{t+15}')
    e(f's_mov_b32 s{S_T}, {WS_WT + 512*8192}'); e(f's_mov_b32 s{S_T+1}, {WS_WT + 513*8192}')
    e(f'buffer_store_dword v{t+12}, v{t}, s[{SWS}:{SWS+3}], s{S_T} offen sc1')
    e(f'buffer_store_dword v{t+14}, v{t}, s[{SWS}:{SWS+3}], s{S_T+1} offen sc1')

GW = 224
XA, XN = 240, 248
V_LOG, V_ALT = 14, 15
def r1_phase(A, opt):
    e = A.e
    vtr, vnat, vwr = V_A, V_A + 1, V_A + 2
    acc, alt = VX + 4, VX + 6
    up = VX + 32 - 8
    e(f's_mul_i32 s{S_T}, s{S_W}, {16*ROWSTRIDE + 64}')
    e(f'v_bfe_u32 v{VT}, v{V_L}, 2, 2'); e(f'v_lshrrev_b32 v{VT+1}, 5, v{V_L}'); e(f'v_lshl_add_u32 v{VT}, v{VT+1}, 2, v{VT}')
    e(f'v_lshlrev_b32 v{VT}, 6, v{VT}')
    e(f'v_bfe_u32 v{VT+1}, v{V_L}, 4, 1'); e(f'v_lshl_add_u32 v{VT}, v{VT+1}, 5, v{VT}')
    e(f'v_and_b32 v{VT+1}, 3, v{V_L}'); e(f'v_lshl_add_u32 v{VT}, v{VT+1}, 3, v{VT}')
    e(f'v_add_u32 v{vtr}, s{S_T}, v{VT}')
    e(f'v_add_u32 v{vnat}, s{S_T}, v{V_L16}')
    e(f'v_and_b32 v{VT}, 31, v{V_L}'); e(f'v_bfe_u32 v{VT+1}, v{V_L}, 1, 2'); e(f'v_lshrrev_b32 v{VT+2}, 5, v{V_L}')
    e(f'v_xor_b32 v{VT+1}, v{VT+1}, v{VT+2}'); e(f'v_lshlrev_b32 v{VT+1}, 4, v{VT+1}')
    e(f'v_lshl_add_u32 v{VT}, v{VT}, 6, v{VT+1}'); e(f'v_add_u32 v{vwr}, s{S_T}, v{VT}')
    e(f'v_xor_b32 v{VT}, 32, v{VT}'); e(f'v_add_u32 v{vwr+1}, s{S_T}, v{VT}')
    e(f's_mov_b32 s{S_T+2}, 0x3f803f80')
    def reads():
        return [f'ds_read_b64_tr_b16 v[{XA+4*j+2*t}:{XA+4*j+2*t+1}], v{vtr} offset:{1024*j+512*t}' for j in range(2) for t in range(2)] + \
               [f'ds_read_b128 {v4(XN+4*q)}, v{vnat} offset:{1024*q}' for q in range(2)]
    for r in reads(): e(r)
    e(f's_mov_b32 s{S_LOOP}, 0')
    e('s_waitcnt lgkmcnt(0)')
    lp = A.newlabel('Lr1'); A.label(lp)
    e(f's_mov_b32 m0, s{S_LOOP}')
    e('s_waitcnt lgkmcnt(2)')
    M = [mf(D0R, v4(XA), a4(FR), None), mf(D0I, v4(XA), a4(FI), None), mf(D0R, v4(XA+4), a4(FR+4), D0R), mf(D0I, v4(XA+4), a4(FI+4), D0I)]
    Gp = [f'v_mov_b32 v{acc}, 0', f'v_mov_b32 v{alt}, 0', f'v_mov_b32 v{alt+1}, 0']
    for q0 in range(0, 8, 2):
        ch = []
        for q in (q0, q0 + 1):
            u = up + 4 * (q % 2)
            ch.append([f'v_lshlrev_b32 v{u}, 16, v{XN+q}', f'v_and_b32 v{u+1}, 0xffff0000, v{XN+q}',
                       f'v_pk_mul_f32 {v2(u+2)}, {v2(u)}, {v2(GW+2*q)}', f'v_pk_add_f32 {v2(alt)}, {v2(alt)}, {v2(u)}',
                       f'v_cvt_pk_bf16_f32 v{u+2}, v{u+2}, v{u+3}', f'v_dot2_f32_bf16 v{acc}, v{u+2}, s{S_T+2}, v{acc}'])
        Gp += zipl(*ch)
    for i in place(Gp, [(-1, [M[0]]), (5, [M[1]]), (11, [M[2]]), (17, [M[3]])]): e(i)
    e(f'v_add_u32 v{vtr}, {ROWSTRIDE}, v{vtr}'); e(f'v_add_u32 v{vnat}, {ROWSTRIDE}, v{vnat}')
    for r in reads(): e(r)
    for i in twiddle1(D0R, D0I, P0R, P0I, False): e(i)
    e(f'v_sub_f32 v{alt}, v{alt}, v{alt+1}')
    e('s_nop 0')
    M = [mf(D1R, a4(A2R), v4(P0R), None), mf(D1R, a4(A2R+4), v4(P0R+4), D1R), mf(D1R, a4(A2I), v4(P0I), D1R), mf(D1R, a4(A2I+4), v4(P0I+4), D1R)]
    Rd = []
    for ctl in ('row_shr:1', 'row_shr:2', 'row_shr:4', 'row_shr:8'):
        Rd += [f'v_add_f32_dpp v{acc}, v{acc}, v{acc} {ctl} row_mask:0xf bank_mask:0xf bound_ctrl:0',
               f'v_add_f32_dpp v{alt}, v{alt}, v{alt} {ctl} row_mask:0xf bank_mask:0xf bound_ctrl:0', 's_nop 0']
    for ctl in ('row_bcast:15 row_mask:0xa', 'row_bcast:31 row_mask:0xc'):
        Rd += [f'v_add_f32_dpp v{acc}, v{acc}, v{acc} {ctl} bank_mask:0xf', f'v_add_f32_dpp v{alt}, v{alt}, v{alt} {ctl} bank_mask:0xf', 's_nop 0']
    Rd += [f'v_readlane_b32 s{S_T+3}, v{acc}, 63', f'v_readlane_b32 s{S_T+4}, v{alt}, 63', 's_nop 1',
           f'v_writelane_b32 v{V_LOG}, s{S_T+3}, m0', f'v_writelane_b32 v{V_ALT}, s{S_T+4}, m0']
    for i in place(Rd, [(-1, [M[0]]), (2, [M[1]]), (5, [M[2]]), (8, [M[3]])]): e(i)
    e('s_nop 1')
    for q in range(8): e(f'v_cvt_pk_bf16_f32 v{P1R+q}, v{D1R+2*q}, v{D1R+2*q+1}')
    e(f'ds_write_b128 v{vwr}, {v4(P1R)}'); e(f'ds_write_b128 v{vwr+1}, {v4(P1R+4)}')
    e(f'v_add_u32 v{vwr}, {ROWSTRIDE}, v{vwr}'); e(f'v_add_u32 v{vwr+1}, {ROWSTRIDE}, v{vwr+1}')
    e(f's_add_u32 s{S_LOOP}, s{S_LOOP}, 1'); e(f's_cmp_lt_u32 s{S_LOOP}, 16'); e(f's_cbranch_scc1 {lp}')
    e(f'v_mul_u32_u24 v{VT}, {ROWSTRIDE}, v{V_L}'); e(f'v_add_u32 v{VT}, s{S_T}, v{VT}')
    e(f'v_cvt_pk_bf16_f32 v{VT+1}, v{V_ALT}, v{V_ALT}')
    e(f'v_cvt_pk_bf16_f32 v{VT+2}, v{V_LOG}, v{V_LOG}'); e(f'v_lshlrev_b32 v{VT+2}, 16, v{VT+2}')
    e(f'v_mul_f32 v{VT+2}, 0xbfb8aa3b, v{VT+2}'); e(f'v_exp_f32 v{VT+2}, v{VT+2}'); e('s_nop 0')
    e(f'v_add_f32 v{VT+2}, 1.0, v{VT+2}'); e(f'v_rcp_f32 v{VT+2}, v{VT+2}'); e('s_nop 0')
    e(f'v_cvt_pk_bf16_f32 v{VT+2}, v{VT+2}, v{VT+2}'); e(f'v_lshlrev_b32 v{VT+2}, 16, v{VT+2}')
    e(f'v_sub_f32 v{VT+3}, 1.0, v{VT+2}'); e(f'v_cvt_pk_bf16_f32 v{VT+3}, v{VT+3}, v{VT+3}'); e(f'v_lshlrev_b32 v{VT+3}, 16, v{VT+3}')
    e(f'v_lshlrev_b32 v{VT+4}, 3, v{V_L}')
    e(f's_lshl_b32 s{S_T+3}, s{S_C}, 9'); e(f's_lshl_b32 s{S_T+4}, s{S_W}, 7'); e(f's_add_u32 s{S_T+3}, s{S_T+3}, s{S_T+4}'); e(f's_add_u32 s{S_T+3}, s{S_T+3}, {WS_G}')
    e('s_mov_b64 exec, 0xffff')
    e(f'ds_write_b16 v{VT}, v{VT+1} offset:2')
    e(f'buffer_store_dwordx2 v[{VT+2}:{VT+3}], v{VT+4}, s[{SWS}:{SWS+3}], s{S_T+3} offen sc1')
    e('s_mov_b64 exec, -1')
    e('s_waitcnt lgkmcnt(0)')
    e('s_barrier')
    e(f'v_lshrrev_b32 v{VT}, 5, v{V_L}'); e(f'v_lshlrev_b32 v{VT}, 2, v{VT}'); e(f'v_and_b32 v{VT+1}, 3, v{V_L}'); e(f'v_add_u32 v{VT}, v{VT}, v{VT+1}')
    e(f'v_lshrrev_b32 v{VT+1}, 1, v{VT}'); e(f'v_lshlrev_b32 v{VT+1}, 6, v{VT+1}')
    e(f'v_bfe_u32 v{VT+2}, v{V_L}, 2, 2'); e(f'v_lshl_add_u32 v{VT}, v{VT}, 3, v{VT+2}')
    e(f'v_mul_u32_u24 v{VT}, {ROWSTRIDE}, v{VT}'); e(f'v_add_u32 v{VT}, v{VT}, v{VT+1}')
    e(f'v_bfe_u32 v{VT+1}, v{V_L}, 4, 1'); e(f'v_lshl_add_u32 v{VT}, v{VT+1}, 3, v{VT}')
    e(f's_lshl_b32 s{S_T}, s{S_W}, 9'); e(f'v_add_u32 v{vtr}, s{S_T}, v{VT}')
    e(f's_lshl_b32 s{S_T}, s{S_W}, 20'); e(f's_lshl_b32 s{S_T+1}, s{S_C}, 12'); e(f's_add_u32 s{S_T}, s{S_T}, s{S_T+1}'); e(f's_add_u32 s{S_T}, s{S_T}, {WS_X1}')
    for gi in range(8):
        b = D0R + (gi % 4) * 16
        for gam in range(4):
            for t in range(2):
                e(f'ds_read_b64_tr_b16 v[{b+4*gam+2*t}:{b+4*gam+2*t+1}], v{vtr} offset:{gi*64 + ((gam ^ ((gi>>1)&3))*16) + t*4*ROWSTRIDE}')
        if gi >= 1:
            pb = D0R + ((gi - 1) % 4) * 16
            e('s_waitcnt lgkmcnt(8)')
            for gam in range(4): e(f'buffer_store_dwordx4 {v4(pb+4*gam)}, v{V_L16}, s[{SWS}:{SWS+3}], s{S_T} offen offset:{gam*1024} sc1')
            e(f's_add_u32 s{S_T}, s{S_T}, 131072')
    e('s_waitcnt lgkmcnt(0)')
    for gam in range(4): e(f'buffer_store_dwordx4 {v4(D0R+48+4*gam)}, v{V_L16}, s[{SWS}:{SWS+3}], s{S_T} offen offset:{gam*1024} sc1')

def cprod(d_re, d_im, xr, xi, cr, ci, cn, data_first):
    def m(d, x, c, acc):
        return mf(d, v4(x), a4(c), acc) if data_first else mf(d, a4(c), v4(x), acc)
    return [m(d_re, xr, cr, None), m(d_im, xr, ci, None), m(d_re, xr+4, cr+4, d_re), m(d_im, xr+4, ci+4, d_im),
            m(d_re, xi, cn, d_re), m(d_im, xi, cr, d_im), m(d_re, xi+4, cn+4, d_re), m(d_im, xi+4, cr+4, d_im)]
def bt(conj):
    L = []
    for p in range(8):
        y0r, y0i, y1r, y1i = D0R+2*p, D0I+2*p, D1R+2*p, D1I+2*p
        n = ' neg_lo:[0,1] neg_hi:[0,1]'
        L += [f'v_pk_add_f32 {v2(VT+8)}, {v2(y0r)}, {v2(y1r)}', f'v_pk_add_f32 {v2(VT+10)}, {v2(y0i)}, {v2(y1i)}',
              f'v_pk_add_f32 {v2(VT+12)}, {v2(y0r)}, {v2(y1r)}' + n, f'v_pk_add_f32 {v2(VT+14)}, {v2(y0i)}, {v2(y1i)}' + n]
        L += zipl(cmul_pair(VT+8, VT+10, TR+2*p, TI+2*p, P0R+p, P0I+p, VT, conj),
                  cmul_pair(VT+12, VT+14, TR+2*p, TI+2*p, P1R+p, P1I+p, VT+4, conj))
    return L
def wmul():
    L = []
    for par, (dr, di, pr, pi) in enumerate(((D0R, D0I, P0R, P0I), (D1R, D1I, P1R, P1I))):
        for p in range(0, 8, 2):
            ch = []
            for k, pp in enumerate((p, p + 1)):
                w = VW + 16 * par + 2 * pp
                u = VT + 8 + 4 * k
                ch.append([f'v_lshlrev_b32 v{u}, 16, v{w}', f'v_lshlrev_b32 v{u+1}, 16, v{w+1}',
                           f'v_and_b32 v{u+2}, 0xffff0000, v{w}', f'v_and_b32 v{u+3}, 0xffff0000, v{w+1}'] +
                          cmul_pair(dr+2*pp, di+2*pp, u, u+2, pr+pp, pi+pp, VT + 4*k, False))
            L += zipl(*ch)
    return L
def wmul_special(A, vq):
    e = A.e
    aw, ard = VX + 2, VX + 3
    PL = 8448
    e(f'v_and_b32 v{VT}, 31, v{V_L}'); e(f'v_lshrrev_b32 v{VT+1}, 5, v{V_L}'); e(f'v_lshlrev_b32 v{VT+1}, 8, v{VT+1}')
    e(f'v_add_u32 v{VT}, v{VT}, v{VT+1}'); e(f'v_lshlrev_b32 v{VT}, 2, v{VT}')
    e(f'v_add_u32 v{aw}, {LDS_SCR}, v{VT}'); e(f'v_sub_u32 v{ard}, {LDS_SCR + 8192 - 7040}, v{VT}')
    off = lambda par, r: 2048 * (r // 4) + 256 * (r % 4) + 128 * par
    for par, (dr, di) in enumerate(((D0R, D0I), (D1R, D1I))):
        for r in range(16):
            e(f'ds_write_b32 v{aw}, v{dr+r} offset:{off(par, r)}')
            e(f'ds_write_b32 v{aw}, v{di+r} offset:{off(par, r) + PL}')
    e('s_mov_b64 exec, 1')
    e(f'ds_write_b32 v{aw}, v{D0R} offset:8192'); e(f'ds_write_b32 v{aw}, v{D0I} offset:{8192+PL}')
    e('s_mov_b64 exec, -1')
    e('s_waitcnt lgkmcnt(0)')
    for par, (dr, di, pr, pi) in enumerate(((D0R, D0I, P0R, P0I), (D1R, D1I, P1R, P1I))):
        for p in range(8):
            R = VX + 4
            for k in range(2):
                e(f'ds_read_b32 v{R+k}, v{ard} offset:{7040 - off(par, 2*p+k)}')
                e(f'ds_read_b32 v{R+2+k}, v{ard} offset:{7040 - off(par, 2*p+k) + PL}')
            u, w, q = VT + 8, VW + 16 * par + 2 * p, vq + 16 * par + 2 * p
            e(f'v_lshlrev_b32 v{u}, 16, v{w}'); e(f'v_lshlrev_b32 v{u+1}, 16, v{w+1}')
            e(f'v_and_b32 v{u+2}, 0xffff0000, v{w}'); e(f'v_and_b32 v{u+3}, 0xffff0000, v{w+1}')
            e(f'v_lshlrev_b32 v{u+4}, 16, v{q}'); e(f'v_lshlrev_b32 v{u+5}, 16, v{q+1}')
            e(f'v_and_b32 v{u+6}, 0xffff0000, v{q}'); e(f'v_and_b32 v{u+7}, 0xffff0000, v{q+1}')
            yr, yi = dr + 2 * p, di + 2 * p
            e(f'v_pk_mul_f32 {v2(VT)}, {v2(yr)}, {v2(u)}')
            e(f'v_pk_mul_f32 {v2(VT+2)}, {v2(yr)}, {v2(u+2)}')
            e(f'v_pk_fma_f32 {v2(VT)}, {v2(yi)}, {v2(u+2)}, {v2(VT)} neg_lo:[1,0,0] neg_hi:[1,0,0]')
            e(f'v_pk_fma_f32 {v2(VT+2)}, {v2(yi)}, {v2(u)}, {v2(VT+2)}')
            e('s_waitcnt lgkmcnt(0)')
            e(f'v_pk_fma_f32 {v2(VT)}, {v2(R)}, {v2(u+4)}, {v2(VT)}')
            e(f'v_pk_fma_f32 {v2(VT+2)}, {v2(R)}, {v2(u+6)}, {v2(VT+2)}')
            e(f'v_pk_fma_f32 {v2(VT)}, {v2(R+2)}, {v2(u+6)}, {v2(VT)}')
            e(f'v_pk_fma_f32 {v2(VT+2)}, {v2(R+2)}, {v2(u+4)}, {v2(VT+2)} neg_lo:[1,0,0] neg_hi:[1,0,0]')
            e(f'v_cvt_pk_bf16_f32 v{pr+p}, v{VT}, v{VT+1}'); e(f'v_cvt_pk_bf16_f32 v{pi+p}, v{VT+2}, v{VT+3}')

def slab_dma(A, src_off_sgpr, src_stride):
    e = A.e
    e(f's_lshl_b32 s{S_T+1}, s{S_W}, 10')
    for i in range(32):
        e(f's_add_u32 m0, s{S_T+1}, {i*SLAB}')
        e(f'buffer_load_dwordx4 v{V_L16}, s[{SWS}:{SWS+3}], s{src_off_sgpr} offen sc1 lds')
        e(f's_add_u32 s{src_off_sgpr}, s{src_off_sgpr}, {src_stride}')

def c_phase(A, opt):
    e = A.e
    vrd, vwr, vz = V_A, V_A + 2, V_A + 3
    S_WT = S_T + 6
    VQ = 224
    e(f's_lshl_b32 s{S_T}, s{S_C}, 17'); e(f's_lshl_b32 s{S_T+1}, s{S_W}, 10'); e(f's_add_u32 s{S_T}, s{S_T}, s{S_T+1}'); e(f's_add_u32 s{S_T}, s{S_T}, {WS_X1}')
    slab_dma(A, S_T, 4096)
    e(f's_lshl_b32 s{S_WT}, s{S_W}, 7'); e(f's_add_u32 s{S_WT}, s{S_WT}, s{S_C}')
    e(f's_cmp_eq_u32 s{S_WT}, 0'); e(f's_cselect_b32 s{S_WT+1}, 1, 0')
    e(f's_lshl_b32 s{S_WT}, s{S_WT}, 13'); e(f's_add_u32 s{S_WT}, s{S_WT}, {WS_WT}')
    e(f'v_bfe_u32 v{VT}, v{V_L}, 2, 2'); e(f'v_lshrrev_b32 v{VT+1}, 5, v{V_L}'); e(f'v_lshl_add_u32 v{VT}, v{VT+1}, 2, v{VT}')
    e(f'v_mul_u32_u24 v{VT}, {SLAB}, v{VT}')
    e(f'v_bfe_u32 v{VT+1}, v{V_L}, 4, 1'); e(f'v_lshl_add_u32 v{VT}, v{VT+1}, 7, v{VT}')
    e(f'v_bfe_u32 v{VT+1}, v{V_L}, 1, 1'); e(f'v_lshl_add_u32 v{VT}, v{VT+1}, 6, v{VT}')
    e(f'v_and_b32 v{VT+1}, 1, v{V_L}'); e(f'v_lshl_add_u32 v{VT}, v{VT+1}, 3, v{VT}')
    e(f's_lshl_b32 s{S_T+1}, s{S_W}, 10'); e(f'v_add_u32 v{vrd}, s{S_T+1}, v{VT}'); e(f'v_add_u32 v{vrd+1}, {16*SLAB}, v{vrd}')
    e(f'v_and_b32 v{VT}, 31, v{V_L}'); e(f'v_mul_u32_u24 v{VT}, {SLAB}, v{VT}'); e(f'v_lshrrev_b32 v{VT+1}, 5, v{V_L}')
    e(f'v_lshl_add_u32 v{VT}, v{VT+1}, 3, v{VT}'); e(f'v_add_u32 v{vwr}, s{S_T+1}, v{VT}')
    e(f'v_lshrrev_b32 v{VT}, 5, v{V_L}'); e(f'v_lshlrev_b32 v{VT}, 9, v{VT}')
    e(f'v_bfe_u32 v{VT+1}, v{V_L}, 4, 1'); e(f'v_lshl_add_u32 v{VT}, v{VT+1}, 7, v{VT}')
    e(f'v_bfe_u32 v{VT+1}, v{V_L}, 1, 1'); e(f'v_lshl_add_u32 v{VT}, v{VT+1}, 6, v{VT}')
    e(f'v_bfe_u32 v{VT+1}, v{V_L}, 2, 2'); e(f'v_lshl_add_u32 v{VT}, v{VT+1}, 4, v{VT}')
    e(f'v_and_b32 v{VT+1}, 1, v{V_L}'); e(f'v_lshl_add_u32 v{VT}, v{VT+1}, 3, v{VT}')
    e(f'v_add_u32 v{vz}, s{S_T+1}, v{VT}')
    e(f's_mov_b32 s{S_LOOP}, 0')
    lp = A.newlabel('Lc'); A.label(lp)
    nsp, sp2 = A.newlabel('Lns'), A.newlabel('Lsp')
    e(f's_mov_b32 s{S_T}, s{S_WT}')
    e(f's_cmp_eq_u32 s{S_WT+1}, 0'); e(f's_cbranch_scc1 {nsp}')
    e(f's_mov_b32 s{S_T}, {WS_WT + 513*8192}'); e(f's_add_u32 s{S_T+2}, s{S_T}, 4096')
    for q in range(8): e(f'buffer_load_dwordx4 {v4(VQ+4*q)}, v{V_L16}, s[{SWS}:{SWS+3}], s{S_T + 2*(q//4)} offen offset:{(q%4)*1024} sc1')
    e(f's_mov_b32 s{S_T}, {WS_WT + 512*8192}')
    A.label(nsp)
    e(f's_add_u32 s{S_T+2}, s{S_T}, 4096')
    for q in range(8): e(f'buffer_load_dwordx4 {v4(VW+4*q)}, v{V_L16}, s[{SWS}:{SWS+3}], s{S_T + 2*(q//4)} offen offset:{(q%4)*1024} sc1')
    e('s_waitcnt vmcnt(8)')
    for b, (pr, pi) in enumerate(((P0R, P0I), (P1R, P1I))):
        for ri, p in enumerate((pr, pi)):
            for j in range(2):
                for t in range(2):
                    e(f'ds_read_b64_tr_b16 v[{p+4*j+2*t}:{p+4*j+2*t+1}], v{vrd+j} offset:{SLAB*8*t + b*512 + ri*16}')
    e('s_waitcnt lgkmcnt(0)')
    for i in cprod(D0R, D0I, P0R, P0I, FR, FI, FN, True) + cprod(D1R, D1I, P1R, P1I, E1R, E1I, E1N, True): e(i)
    e('s_nop 11')
    for i in bt(False): e(i)
    e('s_nop 1')
    for i in cprod(D0R, D0I, P0R, P0I, FR, FI, FN, False) + cprod(D1R, D1I, P1R, P1I, E2R, E2I, E2N, False): e(i)
    e('s_waitcnt vmcnt(0)')
    e('s_nop 11')
    e(f's_cmp_eq_u32 s{S_WT+1}, 0'); e(f's_cbranch_scc0 {sp2}')
    for i in wmul(): e(i)
    back = A.newlabel('Lback'); A.label(back)
    e('s_nop 1')
    for i in cprod(D0R, D0I, P0R, P0I, FR, FN, FI, True) + cprod(D1R, D1I, P1R, P1I, E1R, E1N, E1I, True): e(i)
    e('s_nop 11')
    for i in bt(True): e(i)
    e('s_nop 1')
    for i in cprod(D0R, D0I, P0R, P0I, FR, FN, FI, True) + cprod(D1R, D1I, P1R, P1I, E2R, E2N, E2I, True): e(i)
    e('s_nop 11')
    for b, (dr, di) in enumerate(((D0R, D0I), (D1R, D1I))):
        for ri, d in enumerate((dr, di)):
            for q in range(4):
                t = P0R + ((b * 2 + ri) * 4 + q) * 2
                e(f'v_cvt_pk_bf16_f32 v{t}, v{d+4*q}, v{d+4*q+1}'); e(f'v_cvt_pk_bf16_f32 v{t+1}, v{d+4*q+2}, v{d+4*q+3}')
                e(f'ds_write_b64 v{vwr}, {v2(t)} offset:{b*512 + q*64 + ri*16}')
    e(f's_and_b32 s{S_T}, s{S_LOOP}, 1'); e(f's_mul_i32 s{S_T}, s{S_T}, 192'); e(f's_add_u32 s{S_T}, s{S_T}, 32')
    e(f'v_add_u32 v{vrd}, s{S_T}, v{vrd}'); e(f'v_add_u32 v{vrd+1}, s{S_T}, v{vrd+1}'); e(f'v_add_u32 v{vwr}, s{S_T}, v{vwr}')
    e(f's_add_u32 s{S_WT}, s{S_WT}, {32*8192}'); e(f's_mov_b32 s{S_WT+1}, 0')
    e(f's_add_u32 s{S_LOOP}, s{S_LOOP}, 1'); e(f's_cmp_lt_u32 s{S_LOOP}, 4'); e(f's_cbranch_scc1 {lp}')
    skip = A.newlabel('Lskip'); e(f's_branch {skip}')
    A.label(sp2)
    wmul_special(A, VQ)
    e(f's_branch {back}')
    A.label(skip)
    e('s_waitcnt lgkmcnt(0)')
    e(f's_lshl_b32 s{S_T}, s{S_C}, 12'); e(f's_add_u32 s{S_T}, s{S_T}, s{S_T+1}'); e(f's_add_u32 s{S_T}, s{S_T}, {WS_Z}')
    for blk in range(8):
        b = D0R + (blk % 4) * 16
        if blk and blk % 2 == 0: e(f'v_add_u32 v{vz}, {8*SLAB}, v{vz}')
        for k in range(4):
            for t in range(2):
                e(f'ds_read_b64_tr_b16 v[{b+4*k+2*t}:{b+4*k+2*t+1}], v{vz} offset:{((blk%2)*4+k)*SLAB + t*256}')
        if blk >= 1:
            pb = D0R + ((blk - 1) % 4) * 16
            e('s_waitcnt lgkmcnt(8)')
            for k in range(4):
                e(f'buffer_store_dwordx4 {v4(pb+4*k)}, v{V_L16}, s[{SWS}:{SWS+3}], s{S_T} offen sc1'); e(f's_add_u32 s{S_T}, s{S_T}, 131072')
    e('s_waitcnt lgkmcnt(0)')
    for k in range(4):
        e(f'buffer_store_dwordx4 {v4(D0R+48+4*k)}, v{V_L16}, s[{SWS}:{SWS+3}], s{S_T} offen sc1'); e(f's_add_u32 s{S_T}, s{S_T}, 131072')

def r2_phase(A, opt):
    e = A.e
    vrd, vst, vsg = V_A, V_A + 1, V_A + 2
    e(f's_lshl_b32 s{S_T}, s{S_C}, 17'); e(f's_lshl_b32 s{S_T+1}, s{S_W}, 10'); e(f's_add_u32 s{S_T}, s{S_T}, s{S_T+1}'); e(f's_add_u32 s{S_T}, s{S_T}, {WS_Z}')
    slab_dma(A, S_T, 4096)
    e(f'v_and_b32 v{VT}, 31, v{V_L}'); e(f'v_mul_u32_u24 v{VT+2}, {SLAB}, v{VT}'); e(f'v_lshrrev_b32 v{VT+1}, 5, v{V_L}')
    e(f'v_lshl_add_u32 v{VT+2}, v{VT+1}, 10, v{VT+2}'); e(f's_lshl_b32 s{S_T}, s{S_W}, 8'); e(f'v_add_u32 v{vrd}, s{S_T}, v{VT+2}')
    e(f'v_lshlrev_b32 v{VT}, 6, v{VT}'); e(f'v_lshl_add_u32 v{vst}, v{VT+1}, 4, v{VT}')
    e(f'v_lshlrev_b32 v{VT}, 31, v{V_L}'); e(f'v_or_b32 v{VT}, {lit(2.0**-20)}, v{VT}')
    e(f'v_cmp_gt_u32 vcc, 32, v{V_L}'); e('s_nop 1'); e(f'v_cndmask_b32 v{vsg}, 0, v{VT}, vcc')
    e(f's_lshl_b32 s{S_T+2}, s{S_C}, 17'); e(f's_lshl_b32 s{S_T+3}, s{S_W}, 15'); e(f's_add_u32 s{S_T+2}, s{S_T+2}, s{S_T+3}'); e(f's_add_u32 s{S_T+2}, s{S_T+2}, {WS_A}')
    e('s_waitcnt vmcnt(0)')
    e('s_barrier')
    rd = [f'ds_read_b128 {v4(XA)}, v{vrd}', f'ds_read_b128 {v4(XA+4)}, v{vrd} offset:2048']
    for r in rd: e(r)
    e(f's_mov_b32 s{S_LOOP}, 0')
    lp = A.newlabel('Lr2'); A.label(lp)
    e('s_waitcnt lgkmcnt(0)')
    e(f'v_readlane_b32 s{S_T}, v{XA}, 0')
    for i in [mf(D0R, v4(XA), a4(B1R), None), mf(D0I, v4(XA), a4(B1I), None), mf(D0R, v4(XA+4), a4(B1R+4), D0R), mf(D0I, v4(XA+4), a4(B1I+4), D0I)]: e(i)
    e(f's_and_b32 s{S_T}, s{S_T}, 0xffff0000')
    e(f'v_add_u32 v{vrd}, 16, v{vrd}')
    e('s_nop 7')
    for r in rd: e(r)
    e('s_nop 0')
    e(f'v_fmac_f32 v{D0R}, s{S_T}, v{vsg}')
    for i in twiddle1(D0R, D0I, P0R, P0I, True): e(i)
    e('s_nop 1')
    for i in [mf(D1R, v4(P0R), a4(FR), None), mf(D1R, v4(P0R+4), a4(FR+4), D1R), mf(D1R, v4(P0I), a4(FI), D1R), mf(D1R, v4(P0I+4), a4(FI+4), D1R)]: e(i)
    e('s_nop 11')
    for o, quads in enumerate(((0, 2), (1, 3))):
        for k, q in enumerate(quads):
            e(f'v_cvt_pk_bf16_f32 v{P1R+4*o+2*k}, v{D1R+4*q}, v{D1R+4*q+1}'); e(f'v_cvt_pk_bf16_f32 v{P1R+4*o+2*k+1}, v{D1R+4*q+2}, v{D1R+4*q+3}')
        e(f'buffer_store_dwordx4 {v4(P1R+4*o)}, v{vst}, s[{SWS}:{SWS+3}], s{S_T+2} offen offset:{32*o} {opt.get("a_aux", "")}')
    e(f's_add_u32 s{S_T+2}, s{S_T+2}, 2048')
    e(f's_add_u32 s{S_LOOP}, s{S_LOOP}, 1'); e(f's_cmp_lt_u32 s{S_LOOP}, 16'); e(f's_cbranch_scc1 {lp}')

def crew_body(A, opt):
    e = A.e
    st = opt.get('stamps', False)
    stamp(A, 0, st)
    e('s_load_dwordx2 s[4:5], s[0:1], 0')
    e('s_load_dwordx4 s[52:55], s[0:1], 8')
    e('s_load_dwordx2 s[56:57], s[0:1], 56')
    e('s_load_dwordx4 s[40:43], s[0:1], 72')
    e(f'v_lshrrev_b32 v{V_L16}, 6, v0'); e(f'v_and_b32 v{V_L}, 63, v0')
    e(f'v_readfirstlane_b32 s{S_W}, v{V_L16}')
    e(f'v_lshlrev_b32 v{V_L16}, 4, v{V_L}')
    e(f's_mov_b32 s{S_C}, s2')
    e('s_waitcnt lgkmcnt(0)')
    e('s_mov_b32 s6, s42'); e('s_mov_b32 s7, s43')
    srd(A, SX, 4, 5, X_BYTES); srd(A, SWR, 52, 53, WF_BYTES); srd(A, SWI, 54, 55, WF_BYTES)
    srd(A, SWS, 6, 7, WS_SPAN); srd(A, SGW, 56, 57, 2048); srd(A, SDBG, 40, 41, 256)
    e(f's_lshl_b32 s{S_T}, s{S_C}, 17'); e(f's_lshl_b32 s{S_T+1}, s{S_W}, 15'); e(f's_add_u32 s{S_T}, s{S_T}, s{S_T+1}')
    e(f's_mul_i32 s{S_T+1}, s{S_W}, {16*ROWSTRIDE + 64}')
    for i in range(32):
        e(f's_add_u32 m0, s{S_T+1}, {(i//2)*ROWSTRIDE + (i%2)*1024}')
        e(f'buffer_load_dwordx4 v{V_L16}, s[{SX}:{SX+3}], s{S_T} offen lds')
        e(f's_add_u32 s{S_T}, s{S_T}, 1024')
    e(f'buffer_load_dwordx4 {v4(XA)}, v{V_L16}, s[{SGW}:{SGW+3}], 0 offen')
    e(f'buffer_load_dwordx4 {v4(XA+4)}, v{V_L16}, s[{SGW}:{SGW+3}], 0 offen offset:1024')
    lane_floats(A)
    const3(A, FR, 'F')
    wt_setup(A, V_L, V_A + 8, V_A + 9, S_T, S_W, S_T + 8)
    e('s_waitcnt vmcnt(20)')
    for i in wt_loads(V_A + 8, VW, SWR, SWI, S_T + 8): e(i)
    pq_job(A)
    const_A2(A); const_tw(A, 1024)
    e('s_waitcnt vmcnt(0)')
    for i in wt_pack(VW): e(i)
    for g in wt_stores(V_A + 9, VW, SWS, S_T + 8):
        for i in g: e(i)
    lab = A.newlabel('Lpq'); e(f's_cmp_lg_u32 s{S_W}, 0'); e(f's_cbranch_scc1 {lab}')
    pq_finish(A)
    A.label(lab)
    for q in range(8):
        e(f'v_lshlrev_b32 v{GW+2*q}, 16, v{XA+q}'); e(f'v_and_b32 v{GW+2*q+1}, 0xffff0000, v{XA+q}')
    stamp(A, 1, st)
    r1_phase(A, opt)
    stamp(A, 2, st)
    signal(A, CNT_A)
    lane_floats(A)
    const3(A, E1R, 'E1'); const3(A, E2R, 'E2'); const_tw(A, 2048); const_B1(A)
    stamp(A, 3, st)
    poll(A, [(CNT_A, 32), (CNT_W, opt.get('nw', 224))])
    stamp(A, 4, st)
    c_phase(A, opt)
    stamp(A, 5, st)
    signal(A, CNT_B)
    lane_floats(A)
    const_tw(A, 1024)
    poll(A, [(CNT_B, 32)])
    stamp(A, 6, st)
    r2_phase(A, opt)
    if st: write_stamps(A, 8, WS_STAMP, 9)
```

```python
from asmlib import *

from layout import *
LDS_X, LDS_W = 0, 98304
G1_LDS = 163840

SX, SG, SU, SH = 8, 12, 16, 20
S_XO = 24
S_WO = 32
S_MX, S_MW = 36, 37
S_W, S_RB, S_CB = 38, 39, 40
S_T = 41
S_NL2E = 48
S_HO = 50
S2_WR, S2_WI, S2_WS, S2_DBG, S2_WD, S2_XB = 60, 64, 68, 72, 76, 80
S_SENT, S_PF = 59, 51
S_ST = 96
V_STAMP = 62
V_XRD = 2
V_WRD = 4
V_XDMA, V_WDMA, V_L16 = 8, 9, 10
V_XRD2 = 60
V_PFA = 12
V_T = 16

def acc(wb, mb):
    if wb < 6:
        return ('v', 64 + (wb * 8 + mb) * 4)
    return ('a', 128 + ((wb - 6) * 8 + mb) * 4)
def xfrag(P, mb): return ('a', P * 64 + mb * 4)
def wfrag(P, wb): return ('a', P * 64 + 32 + wb * 4)

def stamp(A, i, on, vs=None):
    if on:
        vs = V_STAMP if vs is None else vs
        A.e(f's_memrealtime s[{S_ST}:{S_ST+1}]')
        A.e(f's_memtime s[{S_ST+2}:{S_ST+3}]')
        A.e('s_waitcnt lgkmcnt(0)')
        A.e(f'v_writelane_b32 v{vs}, s{S_ST}, {i}')
        A.e(f'v_writelane_b32 v{vs+1}, s{S_ST+2}, {i}')

def g1_setup(A, opt):
    e = A.e
    e('v_lshrrev_b32 v1, 6, v0')
    e('v_and_b32 v11, 63, v0')
    e(f'v_readfirstlane_b32 s{S_W}, v1')
    e(f's_and_b32 s{S_T}, s2, 7')
    e(f's_sub_u32 s{S_T+1}, s2, 32')
    e(f's_lshr_b32 s{S_T+1}, s{S_T+1}, 3')
    e(f's_mul_i32 s{S_T+2}, s{S_T+1}, 37')
    e(f's_lshr_b32 s{S_T+2}, s{S_T+2}, 8')
    e(f's_mul_i32 s{S_T+3}, s{S_T+2}, 7')
    e(f's_sub_u32 s{S_T+3}, s{S_T+1}, s{S_T+3}')
    e(f's_lshr_b32 s{S_RB}, s{S_T}, 2')
    e(f's_lshl_b32 s{S_RB}, s{S_RB}, 2')
    e(f's_add_u32 s{S_RB}, s{S_RB}, s{S_T+2}')
    e(f's_and_b32 s{S_CB}, s{S_T}, 3')
    e(f's_mul_i32 s{S_CB}, s{S_CB}, 7')
    e(f's_add_u32 s{S_CB}, s{S_CB}, s{S_T+3}')
    e(f's_lshl_b32 s{S_T}, s{S_RB}, 19')
    e(f's_lshl_b32 s{S_T+1}, s{S_W}, 14')
    e(f's_add_u32 s{S_XO}, s{S_T}, s{S_T+1}')
    for j in range(1, 8):
        e(f's_add_u32 s{S_XO+j}, s{S_XO}, {j*32*2048}')
    e(f's_lshl_b32 s{S_MX}, s{S_W}, 10')
    e(f's_and_b32 s{S_T}, s{S_W}, 1')
    e(f's_lshl_b32 s{S_T}, s{S_T}, 1')
    e(f's_lshr_b32 s{S_T+1}, s{S_W}, 1')
    e(f's_add_u32 s{S_T}, s{S_T}, s{S_T+1}')
    e(f's_lshl_b32 s{S_MW}, s{S_T}, 10')
    e(f's_add_u32 s{S_MW}, s{S_MW}, {LDS_W}')
    e(f's_mul_i32 s{S_T}, s{S_T}, {4*7168}')
    e(f's_lshl_b32 s{S_T+1}, s{S_CB}, 8')
    e(f's_add_u32 s{S_WO}, s{S_T}, s{S_T+1}')
    e(f's_add_u32 s{S_WO+1}, s{S_WO}, {16*7168}')
    e('v_lshrrev_b32 v16, 4, v11')
    e(f's_and_b32 s{S_T}, s{S_W}, 1')
    e(f's_lshl_b32 s{S_T}, s{S_T}, 2')
    e(f'v_add_u32 v16, s{S_T}, v16')
    e('v_and_b32 v17, 7, v11')
    e('v_xor_b32 v16, v16, v17')
    e('v_lshlrev_b32 v16, 4, v16')
    e('v_lshrrev_b32 v17, 3, v11')
    e(f'v_lshl_add_u32 v{V_XDMA}, v17, 11, v16')
    e('v_lshrrev_b32 v16, 4, v11')
    e(f'v_or_b32 v17, s{S_T}, v16')
    e('v_lshlrev_b32 v17, 1, v17')
    e('v_and_b32 v18, 15, v11')
    e('v_xor_b32 v17, v17, v18')
    e('v_lshlrev_b32 v17, 4, v17')
    e(f'v_mul_u32_u24 v16, 7168, v16')
    e(f'v_add_u32 v{V_WDMA}, v16, v17')

def g1_setup2(A, opt):
    e = A.e
    e(f's_lshr_b32 s{S_T}, s{S_W}, 1')
    e(f's_lshl_b32 s{S_T}, s{S_T}, 14')
    e('v_and_b32 v16, 15, v11')
    e('v_lshrrev_b32 v17, 1, v16')
    e('v_lshrrev_b32 v18, 4, v11')
    e('v_xor_b32 v17, v17, v18')
    e('v_lshlrev_b32 v17, 4, v17')
    e('v_lshl_add_u32 v17, v16, 7, v17')
    e(f'v_add_u32 v{V_XRD}, s{S_T}, v17')
    e(f'v_xor_b32 v{V_XRD+1}, 64, v{V_XRD}')
    e(f'v_add_u32 v{V_XRD2}, 0x10000, v{V_XRD}')
    e(f'v_add_u32 v{V_XRD2+1}, 0x10000, v{V_XRD+1}')
    e('v_lshrrev_b32 v17, 2, v16')
    e('v_lshl_add_u32 v19, v18, 3, v17')
    e('v_lshlrev_b32 v19, 8, v19')
    e('v_and_b32 v20, 3, v11')
    e('v_lshl_add_u32 v19, v20, 3, v19')
    e(f'v_add_u32 v19, {LDS_W}, v19')
    e('v_and_b32 v18, 1, v18')
    e('v_lshl_or_b32 v17, v18, 2, v17')
    e(f's_and_b32 s{S_T}, s{S_W}, 1')
    e(f's_lshl_b32 s{S_T}, s{S_T}, 2')
    e(f'v_xor_b32 v17, s{S_T}, v17')
    for bb in range(4):
        e(f'v_xor_b32 v18, {bb}, v17')
        e(f'v_lshl_add_u32 v{V_WRD+bb}, v18, 5, v19')
    e(f'v_lshlrev_b32 v{V_L16}, 4, v11')
    e(f's_lshr_b32 s{S_T}, s{S_W}, 1')
    e(f's_lshl_b32 s{S_T}, s{S_T}, 2')
    e(f's_lshl_b32 s{S_T+1}, s{S_RB}, 3')
    e(f's_add_u32 s{S_T}, s{S_T}, s{S_T+1}')
    e(f's_mul_i32 s{S_T}, s{S_T}, 112')
    e(f's_and_b32 s{S_T+1}, s{S_W}, 1')
    e(f's_lshl_b32 s{S_T+1}, s{S_T+1}, 1')
    e(f's_add_u32 s{S_T}, s{S_T}, s{S_T+1}')
    e(f's_lshl_b32 s{S_T+1}, s{S_CB}, 2')
    e(f's_add_u32 s{S_T}, s{S_T}, s{S_T+1}')
    e(f's_lshl_b32 s{S_HO}, s{S_T}, 11')
    e(f's_mov_b32 s{S_NL2E}, 0xbfb8aa3b')
    e(f's_mov_b32 s{S_NL2E+1}, 0xbfb8aa3b')

def dma_w(u):
    G = []
    for a in range(2):
        for mat in range(2):
            G.append([f's_add_u32 m0, s{S_MW}, {(u % 4) * 16384 + mat * 8192 + a * 4096}',
                      f'buffer_load_dwordx4 v{V_WDMA}, s[{(SG,SU)[mat]}:{(SG,SU)[mat]+3}], s{S_WO+a} offen lds'])
        G[-1].append(f's_add_u32 s{S_WO+a}, s{S_WO+a}, {32*7168}')
    return G
def dma_x(t, half):
    G = []
    for j in range(4 * half, 4 * half + 4):
        G.append([f's_add_u32 m0, s{S_MX}, {LDS_X + (t % 3) * 32768 + j * 4096}',
                  f'buffer_load_dwordx4 v{V_XDMA}, s[{SX}:{SX+3}], s{S_XO+j} offen lds'])
    if half == 1:
        G[-1] += [f's_add_u32 s{SX}, s{SX}, 128', f's_addc_u32 s{SX+1}, s{SX+1}, 0', f's_sub_u32 s{SX+2}, s{SX+2}, 128']
    return G

class VmTrack:
    def __init__(self): self.ops = []
    def issue(self, tag, n=1): self.ops += [tag] * n
    def wait_for(self, tags):
        last = max([i for i, t in enumerate(self.ops) if t in tags], default=-1)
        return len(self.ops) - 1 - last

NOREAD = False
def read_list(u):
    t, s = u // 2, u % 2
    slot = t % 3
    base = (V_XRD2 if slot == 2 else V_XRD) + s
    xs = [f'ds_read_b128 {rr(xfrag(s, mb), 4)}, v{base} offset:{(slot % 2) * 32768 * (slot == 1) + mb*2048}' for mb in range(8)]
    ws = []
    for wb in range(8):
        mat, bb = wb // 4, wb % 4
        for tt in range(2):
            r = wfrag(s, wb)
            ws.append(f'ds_read_b64_tr_b16 {rr((r[0], r[1]+2*tt), 2)}, v{V_WRD+bb} offset:{(u % 4) * 16384 + mat*8192 + tt*1024}')
    R = ws[0:2] + xs + ws[2:]
    if NOREAD and u > 0: return []
    return R

def mfma_list(s, zero=False):
    M = []
    for wb in range(8):
        order = range(8) if wb % 2 == 0 else range(7, -1, -1)
        for mb in order:
            a = acc(wb, mb)
            c = '0' if zero else rr(a, 4)
            M.append(f'v_mfma_f32_16x16x32_bf16 {rr(a,4)}, {rr(wfrag(s,wb),4)}, {rr(xfrag(s,mb),4)}, {c}')
    return M

def g1_main(A, opt):
    import crew
    e = A.e
    st = opt.get('stamps', False)
    side = opt.get('side', True)
    NU = 32
    global NOREAD
    NOREAD = opt.get('no_read', False)
    vm = VmTrack()
    def emit_groups(G, tag):
        for g in G:
            for i in g: e(i)
            vm.issue(tag)
    emit_groups(dma_w(0), 'W0'); emit_groups(dma_x(0, 0) + dma_x(0, 1), 'X0'); emit_groups(dma_w(1), 'W1')
    VD, VLA, VSA, VSENT, VAT, VPF = 24, 21, 22, 12, 56, 58
    S_JJ = 56
    srd(A, SH, 6, 7, H_BYTES, add=WS_H)
    if side:
        srd(A, S2_WR, 84, 85, WF_BYTES); srd(A, S2_WI, 86, 87, WF_BYTES); srd(A, S2_WS, 6, 7, 48 * MB)
        srd(A, S2_DBG, 90, 91, 256); srd(A, S2_WD, 88, 89, W_BYTES); srd(A, S2_XB, 6, 7, XB_BYTES, add=WS_XB)
        crew.wt_setup(A, 11, VLA, VSA, S_T, S_W, S_JJ)
        emit_groups([[i] for i in crew.wt_loads(VLA, VD, S2_WR, S2_WI, S_JJ)], 'WTL')
    g1_setup2(A, opt)
    if side:
        for i in range(4): e(f'v_mov_b32 v{VSENT+i}, -1')
        e(f'v_cmp_eq_u32 vcc, 0, v0'); e(f'v_mov_b32 v{VAT}, 0x7ffffff0'); e(f'v_mov_b32 v{VAT+1}, 1')
        e(f'v_cndmask_b32 v{VAT}, v{VAT}, {crew.CNT_W}, vcc')
        e(f's_sub_u32 s{S_SENT}, s2, 32'); e(f's_lshl_b32 s{S_SENT}, s{S_SENT}, 2'); e(f's_add_u32 s{S_SENT}, s{S_SENT}, s{S_W}')
        e(f's_lshl_b32 s{S_PF}, s{S_SENT}, 13')
        e(f's_mul_i32 s{S_SENT}, s{S_SENT}, 10240')
        e(f'v_lshlrev_b32 v{VPF}, 6, v11')
    e(f's_waitcnt vmcnt({vm.wait_for(["W0", "X0"])})')
    e('s_barrier')
    stamp(A, 1, st)
    for r in read_list(0): e(r)
    rd_start, rd_every = opt.get('rd_start', 1), opt.get('rd_every', 2)
    bar_pos = opt.get('bar_pos', 1)
    signalled = False
    for u in range(NU):
        M = mfma_list(u % 2, zero=(u == 0))
        groups = [(-1, ['s_waitcnt lgkmcnt(0)'])]
        if u + 1 < NU:
            n = vm.wait_for([f'W{u+1}', f'X{(u+1)//2}'])
            done = vm.ops[:len(vm.ops) - n]
            groups.append((bar_pos, [f's_waitcnt vmcnt({n})'] + ([] if opt.get('no_bar') else ['s_barrier'])))
            for i, r in enumerate(read_list(u + 1)): groups.append((bar_pos + rd_start + i * rd_every, [r]))
            D = []
            tg = lambda G, t: [(g, t) for g in G]
            if u == 0: D = tg(dma_x(1, 0) + dma_x(1, 1), 'X1') + tg(dma_w(2), 'W2') + tg(dma_w(3), 'W3')
            elif u == 1: D = tg(dma_x(2, 0) + dma_x(2, 1), 'X2') + tg(dma_w(4), 'W4') + tg(dma_w(5), 'W5')
            elif u == 2: D = tg(dma_w(6), 'W6') + tg(dma_x(3, 0) + dma_x(3, 1), 'X3')
            else:
                if u + 4 < NU: D += tg(dma_w(u + 4), f'W{u+4}')
                xt, xh = (u + 5) // 2, (u + 1) % 2
                if xt < NU // 2: D += tg(dma_x(xt, xh), f'X{xt}')
            every = 8 if len(D) <= 8 else 4
            start = 5 if len(D) <= 8 else 3
            sched = [(start + i * every, g, tag) for i, (g, tag) in enumerate(D)]
            if side:
                if u == 3:
                    assert 'WTL' in done and vm.ops.index('X1') <= len(done)
                    for i, ins in enumerate(crew.wt_pack(VD)): groups.append((50 + i // 2 * 1 + 0, [ins]))
                if u == 4:
                    sched += [(9 + 8 * i, g, 'WTS') for i, g in enumerate(crew.wt_stores(VSA, VD, S2_WS, S_JJ))]
                if 5 <= u < 10:
                    for k in range(2):
                        j = (u - 5) * 2 + k
                        sched.append((9 + 24 * k, [f'buffer_store_dwordx4 v[{VSENT}:{VSENT+3}], v{V_L16}, s[{S2_XB}:{S2_XB+3}], s{S_SENT} offen',
                                                   f's_add_u32 s{S_SENT}, s{S_SENT}, 1024'], 'SENT'))
                if not signalled and 'WTS' in done and 'WTS' not in vm.ops[len(done):]:
                    sched.append((17, [f'buffer_atomic_add v{VAT+1}, v{VAT}, s[{S2_DBG}:{S2_DBG+3}], 0 offen sc1'], 'SIG')); signalled = True
                if u in (12, 13) and opt.get('pf_wd', True):
                    sched.append((9, [f'buffer_load_dword v{VPF+1}, v{VPF}, s[{S2_WD}:{S2_WD+3}], s{S_PF} offen', f's_add_u32 s{S_PF}, s{S_PF}, 4096'], 'PF'))
            sched.sort(key=lambda x: x[0])
            for pos, g, tag in sched:
                assert bar_pos < pos < 64, pos
                if g[0].startswith('s_add_u32 m0') and opt.get('m0_early', True) and every == 8:
                    groups.append((pos - 2, g[:1])); groups.append((pos, g[1:2])); groups.append((min(pos + 2, 63), g[2:]))
                else:
                    groups.append((pos, g))
                vm.issue(tag)
        for i in place(M, groups): e(i)
    assert signalled or not side
    stamp(A, 2, st)
    g1_epilogue(A, opt)

def g1_epilogue(A, opt):
    e = A.e
    e('s_nop 7')
    aux = opt.get('h_aux', '')
    n = 0
    for mb in range(8):
        for p in range(2):
            T = V_T + (n % 2) * 24
            n += 1
            G = [acc(2*p, mb)[1], acc(2*p+1, mb)[1]]
            U = [acc(4+2*p, mb), acc(5+2*p, mb)]
            for h in range(2):
                for q in range(2):
                    e(f'v_pk_mul_f32 v[{T+4*h+2*q}:{T+4*h+2*q+1}], v[{G[h]+2*q}:{G[h]+2*q+1}], s[{S_NL2E}:{S_NL2E+1}]')
            if U[0][0] == 'a':
                for h in range(2):
                    for i in range(4):
                        e(f'v_accvgpr_read_b32 v{T+8+4*h+i}, a{U[h][1]+i}')
                Uv = [T+8, T+12]
            else:
                Uv = [U[0][1], U[1][1]]
            for i in range(8): e(f'v_exp_f32 v{T+i}, v{T+i}')
            for h in range(2):
                for q in range(2):
                    e(f'v_pk_mul_f32 v[{T+8+4*h+2*q}:{T+8+4*h+2*q+1}], v[{G[h]+2*q}:{G[h]+2*q+1}], v[{Uv[h]+2*q}:{Uv[h]+2*q+1}]')
            for q in range(4):
                e(f'v_pk_add_f32 v[{T+2*q}:{T+2*q+1}], v[{T+2*q}:{T+2*q+1}], 1.0 op_sel_hi:[1,0]')
            for i in range(8): e(f'v_rcp_f32 v{T+i}, v{T+i}')
            e('s_nop 0')
            for q in range(4):
                e(f'v_pk_mul_f32 v[{T+8+2*q}:{T+8+2*q+1}], v[{T+8+2*q}:{T+8+2*q+1}], v[{T+2*q}:{T+2*q+1}]')
            for q in range(4):
                e(f'v_cvt_pk_bf16_f32 v{T+16+q}, v{T+8+2*q}, v{T+8+2*q+1}')
            off = ((mb // 2) * 112 + p) * 2048 + (mb % 2) * 1024
            e(f's_add_u32 s{S_T}, s{S_HO}, {off}')
            e(f'buffer_store_dwordx4 v[{T+16}:{T+19}], v{V_L16}, s[{SH}:{SH+3}], s{S_T} offen {aux}')

def write_stamps(A, n, off=WS_STAMP, vs=None):
    e = A.e
    vs = V_STAMP if vs is None else vs
    e('s_waitcnt vmcnt(0) lgkmcnt(0)')
    stamp(A, n-1, True, vs)
    srd(A, 88, 6, 7, 1 << 20, add=off)
    e('s_lshl_b32 s92, s2, 7')
    e('v_lshlrev_b32 v16, 2, v0')
    lab = A.newlabel('Lst')
    e('v_cmp_gt_u32 vcc, 16, v0')
    e('s_and_saveexec_b64 s[94:95], vcc')
    e(f's_cbranch_execz {lab}')
    e(f'buffer_store_dword v{vs}, v16, s[88:91], s92 offen')
    e(f'buffer_store_dword v{vs+1}, v16, s[88:91], s92 offen offset:64')
    A.label(lab)

def g1_body(A, opt):
    e = A.e
    st = opt.get('stamps', False)
    stamp(A, 0, st)
    e('s_load_dwordx2 s[4:5], s[0:1], 0')
    e('s_load_dwordx4 s[52:55], s[0:1], 32')
    e('s_load_dwordx2 s[6:7], s[0:1], 80')
    e('s_load_dwordx4 s[84:87], s[0:1], 8')
    e('s_load_dwordx2 s[88:89], s[0:1], 48')
    e('s_load_dwordx2 s[90:91], s[0:1], 72')
    g1_setup(A, opt)
    e('s_waitcnt lgkmcnt(0)')
    srd(A, SX, 4, 5, X_BYTES)
    srd(A, SG, 52, 53, W_BYTES)
    srd(A, SU, 54, 55, W_BYTES)
    g1_main(A, opt)
    if st: write_stamps(A, 4)

def g1_kernel(A, opt, name='g1_kernel'):
    kernel_begin(A, name)
    e = A.e
    end = A.newlabel('Lg1end')
    e('s_cmp_ge_u32 s2, 256'); e(f's_cbranch_scc1 {end}')
    e('s_cmp_lt_u32 s2, 32'); e(f's_cbranch_scc1 {end}')
    g1_body(A, opt)
    A.label(end)
    e('s_endpgm')

def gen_g1_only(opt, name='g1_kernel'):
    A = Asm()
    A.raw(f'; @launch kernel={name} grid=(256,1,1) block=(256,1,1) lds={G1_LDS}')
    A.raw('.amdgcn_target "amdgcn-amd-amdhsa--gfx950"')
    A.raw('.text')
    g1_kernel(A, opt, name)
    A.raw('.section .rodata,"a"')
    A.raw(kernel_desc(name, vgpr=256+192, accum=256))
    return A.text()
```

```python
from asmlib import *
from layout import *
from g1 import VmTrack, write_stamps
import g1
def stamp(A, i, on): g1.stamp(A, i, on, 180)

NS = 8
G2_LDS = NS * 16384
NSL = 28
SH, SD, SO, SXB, SA, SGT = 8, 12, 16, 20, 24, 28
S_W, S_RB, S_CB, S_HALF = 32, 33, 34, 35
S_AO = 36
S_BO = 37
S_MB = 41
S_T = 42
S_XS, S_XR = 48, 49
S_OO, S_AAO, S_GO = 50, 51, 52
S_CNT = 53
V_L16, V_BDMA = 2, 3
V_BRD = 4
V_OUT, V_AADDR, V_GADDR = 20, 21, 22
V_T = 24
V_ACC = 64
V_PART = 128
V_AV = 160
V_G = 176
def acc(b, mb): return V_ACC + (b * 2 + mb) * 4
def afrag(t, ks, mb): return ('a', (t % NS) * 16 + (ks * 2 + mb) * 4)
def bfrag(P, b): return ('a', 128 + P * 32 + b * 4)

def g2_setup(A, opt):
    e = A.e
    e('v_lshrrev_b32 v1, 6, v0')
    e('v_and_b32 v23, 63, v0')
    e(f'v_readfirstlane_b32 s{S_W}, v1')
    e(f's_and_b32 s{S_T}, s2, 7')
    e(f's_lshr_b32 s{S_T+1}, s2, 3')
    e(f's_lshr_b32 s{S_HALF}, s{S_T}, 2')
    e(f's_and_b32 s{S_RB}, s{S_T}, 2')
    e(f's_lshl_b32 s{S_RB}, s{S_RB}, 2')
    e(f's_lshr_b32 s{S_T+2}, s{S_T+1}, 2')
    e(f's_add_u32 s{S_RB}, s{S_RB}, s{S_T+2}')
    e(f's_and_b32 s{S_CB}, s{S_T}, 1')
    e(f's_lshl_b32 s{S_CB}, s{S_CB}, 2')
    e(f's_and_b32 s{S_T+2}, s{S_T+1}, 3')
    e(f's_add_u32 s{S_CB}, s{S_CB}, s{S_T+2}')
    e(f's_lshl_b32 s{S_T}, s{S_RB}, 2')
    e(f's_add_u32 s{S_T}, s{S_T}, s{S_W}')
    e(f's_mul_i32 s{S_T}, s{S_T}, 112')
    e(f's_mul_i32 s{S_T+1}, s{S_HALF}, 56')
    e(f's_add_u32 s{S_T}, s{S_T}, s{S_T+1}')
    e(f's_lshl_b32 s{S_AO}, s{S_T}, 11')
    e(f's_mul_i32 s{S_T}, s{S_HALF}, 1792')
    e(f's_lshl_b32 s{S_T+1}, s{S_W}, 2')
    e(f's_add_u32 s{S_T}, s{S_T}, s{S_T+1}')
    e(f's_lshl_b32 s{S_T}, s{S_T}, 11')
    e(f's_lshl_b32 s{S_T+1}, s{S_CB}, 8')
    e(f's_add_u32 s{S_BO}, s{S_T}, s{S_T+1}')
    for a in range(1, 4): e(f's_add_u32 s{S_BO+a}, s{S_BO}, {a*16*2048}')
    e(f's_lshl_b32 s{S_MB}, s{S_W}, 10')
    e(f'v_lshlrev_b32 v{V_L16}, 4, v23')
    e('v_lshrrev_b32 v24, 4, v23')
    e(f's_and_b32 s{S_T}, s{S_W}, 1')
    e(f's_lshl_b32 s{S_T}, s{S_T}, 2')
    e(f'v_or_b32 v25, s{S_T}, v24')
    e('v_lshlrev_b32 v25, 1, v25')
    e('v_and_b32 v26, 15, v23')
    e('v_xor_b32 v25, v25, v26')
    e('v_lshlrev_b32 v25, 4, v25')
    e(f'v_lshl_add_u32 v{V_BDMA}, v24, 11, v25')

def g2_setup2(A, opt):
    e = A.e
    e('v_lshrrev_b32 v24, 2, v23')
    e('v_and_b32 v25, 3, v23')
    e('v_lshlrev_b32 v25, 3, v25')
    e('v_lshl_add_u32 v25, v24, 8, v25')
    e('v_and_b32 v24, 7, v24')
    e(f's_lshl_b32 s{S_T}, s{S_HALF}, 2')
    e(f'v_xor_b32 v24, s{S_T}, v24')
    for b in range(8):
        e(f'v_xor_b32 v26, {b}, v24')
        e(f'v_lshl_add_u32 v{V_BRD+b}, v26, 5, v25')
        e(f'v_add_u32 v{V_BRD+8+b}, 0x10000, v{V_BRD+b}')
    e(f's_lshl_b32 s{S_T}, s{S_RB}, 3')
    e(f's_add_u32 s{S_T}, s{S_T}, s{S_CB}')
    e(f's_lshl_b32 s{S_T}, s{S_T}, 1')
    e(f's_add_u32 s{S_T+1}, s{S_T}, s{S_HALF}')
    e(f's_xor_b32 s{S_T}, s{S_T+1}, 1')
    e(f's_lshl_b32 s{S_T+2}, s{S_W}, 13')
    e(f's_lshl_b32 s{S_XS}, s{S_T}, 15')
    e(f's_add_u32 s{S_XS}, s{S_XS}, s{S_T+2}')
    e(f's_lshl_b32 s{S_XR}, s{S_T+1}, 15')
    e(f's_add_u32 s{S_XR}, s{S_XR}, s{S_T+2}')
    e(f's_lshl_b32 s{S_T}, s{S_RB}, 2')
    e(f's_add_u32 s{S_T}, s{S_T}, s{S_W}')
    e(f's_lshl_b32 s{S_GO}, s{S_T}, 8')
    e(f's_lshl_b32 s{S_OO}, s{S_T}, 16')
    e(f's_lshl_b32 s{S_T}, s{S_CB}, 8')
    e(f's_add_u32 s{S_OO}, s{S_OO}, s{S_T}')
    e(f's_lshl_b32 s{S_T}, s{S_HALF}, 7')
    e(f's_add_u32 s{S_OO}, s{S_OO}, s{S_T}')
    e(f's_add_u32 s{S_AAO}, s{S_OO}, {16*2048}')
    e('v_and_b32 v24, 15, v23')
    e('v_lshrrev_b32 v25, 4, v23')
    e('v_lshlrev_b32 v26, 4, v25')
    e(f'v_lshl_add_u32 v{V_AADDR}, v24, 11, v26')
    e('v_and_b32 v26, 1, v25')
    e('v_lshlrev_b32 v26, 5, v26')
    e('v_lshrrev_b32 v25, 1, v25')
    e('v_lshl_add_u32 v26, v25, 4, v26')
    e(f'v_lshl_add_u32 v{V_OUT}, v24, 11, v26')
    e(f'v_lshlrev_b32 v{V_GADDR}, 3, v24')

def dma_b(t):
    G = []
    for a in range(4):
        G.append([f's_add_u32 m0, s{S_MB}, {(t % NS) * 16384 + a * 4096}',
                  f'buffer_load_dwordx4 v{V_BDMA}, s[{SD}:{SD+3}], s{S_BO+a} offen lds',
                  f's_add_u32 s{S_BO+a}, s{S_BO+a}, {64*2048}'])
    return G
def load_a(t, aux=''):
    G = []
    for i in range(4):
        G.append([f'buffer_load_dwordx4 {rr(afrag(t, i // 2, i % 2), 4)}, v{V_L16}, s[{SH}:{SH+3}], s{S_AO} offen offset:{i*1024} {aux}'])
    G[-1].append(f's_add_u32 s{S_AO}, s{S_AO}, 4096')
    return G
def read_b(u):
    t, ks = u // 2, u % 2
    slot = t % NS
    R = []
    for b in range(8):
        for tt in range(2):
            r = bfrag(u % 2, b)
            R.append(f'ds_read_b64_tr_b16 {rr((r[0], r[1]+2*tt), 2)}, v{V_BRD + 8*(slot//4) + b} offset:{(slot % 4)*16384 + ks*8192 + tt*4096}')
    return R
def mfmas(u):
    t, ks = u // 2, u % 2
    M = []
    for b in range(8):
        for mb in ((0, 1) if b % 2 == 0 else (1, 0)):
            c = '0' if u == 0 else vr(acc(b, mb), 4)
            M.append(f'v_mfma_f32_16x16x32_bf16 {vr(acc(b,mb),4)}, {rr(bfrag(u%2,b),4)}, {rr(afrag(t,ks,mb),4)}, {c}')
    return M

def g2_main(A, opt):
    e = A.e
    st = opt.get('stamps', False)
    vm = VmTrack()
    def emit_groups(G, tag):
        for g in G:
            for i in g: e(i)
            vm.issue(tag)
    npre = opt.get('npre', NS - 1)
    for t in range(npre):
        emit_groups(dma_b(t), f'B{t}'); emit_groups(load_a(t), f'A{t}')
        if t == 1: g2_setup2(A, opt)
    nextB, nextA = npre, npre
    e(f's_waitcnt vmcnt({vm.wait_for(["B0", "A0"])})')
    e('s_barrier')
    stamp(A, 1, st)
    for r in read_b(0): e(r)
    NU = 2 * NSL
    for u in range(NU):
        t = u // 2
        M = mfmas(u)
        groups = [(-1, ['s_waitcnt lgkmcnt(0)'])]
        rpos = 0
        D = []
        if u % 2 == 1 and t + 1 < NSL:
            n = vm.wait_for([f'B{t+1}', f'A{t+1}'])
            groups.append((-1, [f's_waitcnt vmcnt({n})', 's_barrier']))
        limB = (t + NS) if u % 2 == 1 else (t - 1 + NS)
        limA = t - 1 + NS
        if u % 2 == 1 and nextB <= limB and nextB < NSL:
            D += [(g, f'B{nextB}') for g in dma_b(nextB)]; nextB += 1
        if u % 2 == 0 and nextA <= limA and nextA < NSL:
            D += [(g, f'A{nextA}') for g in load_a(nextA)]; nextA += 1
        if u == NU - 12:
            for mb in range(2):
                for p in range(2):
                    D.append(([f'buffer_load_dwordx4 v[{V_AV+(mb*2+p)*4}:{V_AV+(mb*2+p)*4+3}], v{V_AADDR}, s[{SA}:{SA+3}], s{(S_OO,S_AAO)[mb]} offen offset:{p*64}'], 'E'))
                D.append(([f'buffer_load_dwordx2 v[{V_G+2*mb}:{V_G+2*mb+1}], v{V_GADDR}, s[{SGT}:{SGT+3}], s{S_GO} offen offset:{mb*128}'], 'E'))
        if u + 1 < NU:
            for i, r in enumerate(read_b(u + 1)): groups.append((min(i, 15), [r]))
        for i, (g, tag) in enumerate(D):
            groups.append((min(1 + i * (16 // max(len(D), 1)), 15), g)); vm.issue(tag)
        for i in place(M, groups): e(i)
    stamp(A, 2, st)
    e('s_nop 7')
    for i in range(8):
        r = acc(4 + i // 2, i % 2)
        if i == 4: e(f's_add_u32 s{S_XS}, s{S_XS}, 4096')
        e(f'buffer_store_dwordx4 v[{r}:{r+3}], v{V_L16}, s[{SXB}:{SXB+3}], s{S_XS} offen offset:{(i%4)*1024} sc1')
    e(f's_add_u32 s{S_T}, s{S_XR}, 4096')
    e(f's_mov_b32 s{S_CNT}, {opt.get("spin", 20000)}')
    lp, dn = A.newlabel('Lpoll'), A.newlabel('Lpdone')
    A.label(lp)
    for i in range(8):
        e(f'buffer_load_dwordx4 v[{V_PART+4*i}:{V_PART+4*i+3}], v{V_L16}, s[{SXB}:{SXB+3}], s{(S_XR, S_T)[i//4]} offen offset:{(i%4)*1024} sc1')
    e('s_waitcnt vmcnt(0)')
    e(f'v_max3_u32 v{V_T}, v{V_PART}, v{V_PART+1}, v{V_PART+2}')
    for i in range(3, 31, 2):
        e(f'v_max3_u32 v{V_T}, v{V_T}, v{V_PART+i}, v{V_PART+i+1}')
    e(f'v_max_u32 v{V_T}, v{V_T}, v{V_PART+31}')
    e(f'v_cmp_eq_u32 vcc, -1, v{V_T}')
    e(f's_sub_u32 s{S_CNT}, s{S_CNT}, 1')
    e(f's_cbranch_scc1 {dn}')
    e(f's_cbranch_vccnz {lp}')
    A.label(dn)
    stamp(A, 3, st)
    for mb in range(2):
        for p in range(2):
            T = V_T + 4 + (mb * 2 + p) * 8
            av = V_AV + (mb * 2 + p) * 4
            g, omg = V_G + 2 * mb, V_G + 2 * mb + 1
            for bb in range(2):
                b = 2 * p + bb
                r = acc(b, mb); q = V_PART + (b * 2 + mb) * 4
                e(f'v_pk_add_f32 v[{r}:{r+1}], v[{r}:{r+1}], v[{q}:{q+1}]')
                e(f'v_pk_add_f32 v[{r+2}:{r+3}], v[{r+2}:{r+3}], v[{q+2}:{q+3}]')
                e(f'v_lshlrev_b32 v{T}, 16, v{av+2*bb}')
                e(f'v_and_b32 v{T+1}, 0xffff0000, v{av+2*bb}')
                e(f'v_lshlrev_b32 v{T+2}, 16, v{av+2*bb+1}')
                e(f'v_and_b32 v{T+3}, 0xffff0000, v{av+2*bb+1}')
                e(f'v_pk_mul_f32 v[{T}:{T+1}], v[{T}:{T+1}], v[{g}:{g+1}] op_sel_hi:[1,0]')
                e(f'v_pk_mul_f32 v[{T+2}:{T+3}], v[{T+2}:{T+3}], v[{g}:{g+1}] op_sel_hi:[1,0]')
                e(f'v_pk_fma_f32 v[{T}:{T+1}], v[{r}:{r+1}], v[{g}:{g+1}], v[{T}:{T+1}] op_sel:[0,1,0] op_sel_hi:[1,1,1]')
                e(f'v_pk_fma_f32 v[{T+2}:{T+3}], v[{r+2}:{r+3}], v[{g}:{g+1}], v[{T+2}:{T+3}] op_sel:[0,1,0] op_sel_hi:[1,1,1]')
                e(f'v_cvt_pk_bf16_f32 v{T+4+2*bb}, v{T}, v{T+1}')
                e(f'v_cvt_pk_bf16_f32 v{T+5+2*bb}, v{T+2}, v{T+3}')
            e('s_nop 1')
            e(f'v_permlane16_swap_b32 v{T+4}, v{T+6}')
            e(f'v_permlane16_swap_b32 v{T+5}, v{T+7}')
            e(f'buffer_store_dwordx4 v[{T+4}:{T+7}], v{V_OUT}, s[{SO}:{SO+3}], s{(S_OO,S_AAO)[mb]} offen offset:{p*64}')

def g2_kernel(A, opt, name='g2_kernel'):
    kernel_begin(A, name)
    e = A.e
    st = opt.get('stamps', False)
    end = A.newlabel('Lg2end')
    e('s_cmp_ge_u32 s2, 256'); e(f's_cbranch_scc1 {end}')
    stamp(A, 0, st)
    e('s_load_dwordx2 s[4:5], s[0:1], 48')
    e('s_load_dwordx2 s[54:55], s[0:1], 64')
    e('s_load_dwordx2 s[6:7], s[0:1], 80')
    g2_setup(A, opt)
    e('s_waitcnt lgkmcnt(0)')
    srd(A, SH, 6, 7, H_BYTES, add=WS_H)
    srd(A, SD, 4, 5, W_BYTES)
    srd(A, SO, 54, 55, OUT_BYTES)
    srd(A, SXB, 6, 7, XB_BYTES, add=WS_XB)
    srd(A, SA, 6, 7, A_BYTES, add=WS_A)
    srd(A, SGT, 6, 7, G_BYTES, add=WS_G)
    g2_main(A, opt)
    if st: write_stamps(A, 5, WS_STAMP2, 180)
    A.label(end)
    e('s_endpgm')
```

```python
MB = 1 << 20
WS_H = 0
H_BYTES = 2048 * 3584 * 2
WS_XB = 16 * MB
XB_BYTES = 8 * MB
WS_A = 24 * MB
A_BYTES = 4 * MB
WS_G = 28 * MB
G_BYTES = 2048 * 8
WS_X1 = 32 * MB
WS_Z = 36 * MB
WS_WT = 40 * MB
WT_BYTES = 514 * 8192
WS_STAMP = 200 * MB
WS_STAMP2 = 201 * MB
X_BYTES = 2048 * 1024 * 2
W_BYTES = 1024 * 3584 * 2
WF_BYTES = 2048 * 513 * 2
OUT_BYTES = 2048 * 1024 * 2
```

```python
from asmlib import *
import g1, g2, crew
NAME = 'gated_mix__spectral_gfnet__swiglu_ffn__prompt'
HDR = open('cdna_kernels/' + NAME + '.s.ref').read().split('; Override launch')[0] if True else ''
def gen(o1={}, oc={}, o2={}):
    A = Asm()
    for l in HDR.rstrip('\n').split('\n'): A.raw(l)
    A.raw(f'; @launch kernel=ffn_up_fft_kernel grid=(256,1,1) block=(256,1,1) lds={g1.G1_LDS}')
    A.raw(f'; @launch kernel=ffn_down_mix_kernel grid=(256,1,1) block=(256,1,1) lds={g2.G2_LDS}')
    A.raw('.amdgcn_target "amdgcn-amd-amdhsa--gfx950"')
    A.raw('.text')
    kernel_begin(A, 'ffn_up_fft_kernel')
    e = A.e
    e('s_cmp_ge_u32 s2, 256'); e('s_cbranch_scc1 Lk1end0')
    e('s_cmp_ge_u32 s2, 32'); e('s_cbranch_scc1 Lg1')
    crew.crew_body(A, oc)
    A.label('Lk1end0')
    e('s_endpgm')
    A.label('Lg1')
    g1.g1_body(A, o1)
    e('s_endpgm')
    g2.g2_kernel(A, o2, 'ffn_down_mix_kernel')
    A.raw('.section .rodata,"a"')
    A.raw(kernel_desc('ffn_up_fft_kernel', vgpr=256+192, accum=256))
    A.raw(kernel_desc('ffn_down_mix_kernel', vgpr=256+192, accum=256))
    return A.text()
if __name__ == '__main__':
    import sys
    if len(sys.argv) > 1 and sys.argv[1] == 'final':
        open('cdna_kernels/' + NAME + '.s', 'w').write(gen(dict(h_aux='sc1'), {}, dict(npre=3)))
    else:
        st = dict(stamps=True)
        open('full.s', 'w').write(gen(dict(st, h_aux='sc1'), st, dict(st, npre=3)))
```
